```python
import torch

def _softmax(x, axis=-1):
    return torch.softmax(x, dim=axis)
def _gelu(x):
    return torch.nn.functional.gelu(x, approximate="tanh")
def _silu(x):
    return torch.nn.functional.silu(x)
def _sigmoid(x):
    return torch.sigmoid(x)
def _layernorm(x, axis=-1, eps=1e-5):
    m = x.mean(dim=axis, keepdim=True)
    v = x.var(dim=axis, keepdim=True, unbiased=False)
    return (x - m) / torch.sqrt(v + eps)
def _scatter_add(tgt, idx, src, axis=0):
    return tgt.clone().index_add_(axis, idx, src)
def _segment_sum(src, seg, n):
    out = torch.zeros((n,) + src.shape[1:], dtype=src.dtype)
    return out.index_add_(0, seg, src)
def _pad(x, pw):
    flat = tuple(v for pair in reversed(pw) for v in pair)
    return torch.nn.functional.pad(x, flat)

kernel_name = 'standalone__deep_cross_wide_deep__recsys'

def setup_inputs():

    _w = (lambda a: (lambda t: t.to(torch.bfloat16) if t.is_floating_point() else t)(torch.as_tensor(a)))
    B, F, D = 4096, 100, 64
    V, Nd = min(100000, 100000), 13
    Din = F * D
    H = 4 * D
    return {
        "idx": _w((lambda lo, hi, *s: torch.randint(lo, hi, s))(0, V, B, F).to(torch.int64)),
        "table": _w((lambda *s: torch.randn(*s, dtype=torch.bfloat16) * 1.6)(V, D) * 0.05),
        "x_wide": _w((lambda *s: torch.randn(*s, dtype=torch.bfloat16) * 1.6)(B, Nd)),
        "w_wide": _w((lambda *s: torch.randn(*s, dtype=torch.bfloat16) * 1.6)(Nd) * 0.05),
        "b_wide": _w((lambda *s: torch.randn(*s, dtype=torch.bfloat16) * 1.6)(1) * 0.01),
        "W1": _w((lambda *s: torch.randn(*s, dtype=torch.bfloat16) * 1.6)(Din, H) * (2.0 / Din) ** 0.5),
        "b1": _w((lambda *s: torch.randn(*s, dtype=torch.bfloat16) * 1.6)(H) * 0.01),
        "W2": _w((lambda *s: torch.randn(*s, dtype=torch.bfloat16) * 1.6)(H) * (1.0 / H) ** 0.5),
        "b2": _w((lambda *s: torch.randn(*s, dtype=torch.bfloat16) * 1.6)(1) * 0.01),
    }

def reference(idx, table, x_wide, w_wide, b_wide, W1, b1, W2, b2):
    emb = table[idx]
    deep_in = emb.reshape(emb.shape[0], -1)
    h = deep_in @ W1 + b1
    h = h * (lambda x, dt: x.to(dt))(h > 0, h.dtype)
    deep_logit = h @ W2 + b2
    wide_logit = x_wide @ w_wide + b_wide
    return _sigmoid(wide_logit + deep_logit)
```

```python
import re
KNAME = "standalone__deep_cross_wide_deep__recsys_kernel"
HEADER_COMMENT = open("standalone__deep_cross_wide_deep__recsys.s.ref").read().split("; @launch")[0]

class Asm:
    def __init__(self):
        self.lines = []
        self.nlabel = 0
    def __call__(self, s, *args):
        for l in s.strip("\n").split("\n"):
            l = l.strip()
            m = re.search(r"offset:(-?\d+)", l)
            if m:
                o = int(m.group(1))
                if l.startswith("buffer_"): assert 0 <= o < 4096, l
                elif l.startswith("ds_"): assert 0 <= o < 65536, l
                elif l.startswith("global_"): assert -4096 <= o < 4096, l
            self.lines.append("    " + l)
    def label(self, name):
        self.lines.append(name + ":")
    def newlabel(self, prefix="L"):
        self.nlabel += 1
        return f"{prefix}_{self.nlabel}"
    def comment(self, s):
        self.lines.append("    ; " + s)
    def text(self):
        return "\n".join(self.lines)

def kernel_text(name, body, vgpr=256, sgpr=102, accum=256):
    return f""".globl {name}
.p2align 8
.type {name},@function
{name}:
{body}
    s_endpgm
"""

def kd_text(name, vgpr=256, sgpr=102, accum=256):
    return f""".p2align 6
.amdhsa_kernel {name}
  .amdhsa_next_free_vgpr {vgpr}
  .amdhsa_next_free_sgpr {sgpr}
  .amdhsa_accum_offset {accum}
  .amdhsa_group_segment_fixed_size 0
  .amdhsa_kernarg_size 96
  .amdhsa_user_sgpr_count 2
  .amdhsa_user_sgpr_kernarg_segment_ptr 1
  .amdhsa_system_sgpr_workgroup_id_x 1
.end_amdhsa_kernel
"""

def file_text(launch_lines, kernels):
    out = HEADER_COMMENT
    for l in launch_lines:
        out += l + "\n"
    out += '.amdgcn_target "amdgcn-amd-amdhsa--gfx950"\n.text\n'
    for (name, body, vgpr, sgpr, accum) in kernels:
        out += kernel_text(name, body)
    out += '.section .rodata,"a"\n'
    for (name, body, vgpr, sgpr, accum) in kernels:
        out += kd_text(name, vgpr, sgpr, accum)
    return out

def srd(a, d, b, nbytes):
    a(f"""s_mov_b32 s{d}, s{b}
    s_and_b32 s{d+1}, s{b+1}, 0xffff
    s_mov_b32 s{d+2}, {nbytes}
    s_mov_b32 s{d+3}, 0x00020000""")

def stamp(a, i):
    a(f"s_memrealtime s[{80+2*i}:{81+2*i}]")

def stamp_init(a):
    for i in range(16):
        a(f"s_mov_b32 s{80+i}, 0")

def stamp_store(a, ws_srd, vtmp=0, wave_sgpr=None):
    l = a.newlabel("Lst")
    a("s_waitcnt lgkmcnt(0)")
    a(f"v_cmp_eq_u32 vcc, 0, v{vtmp+5}")
    a(f"s_and_saveexec_b64 s[96:97], vcc")
    a(f"s_cbranch_execz {l}")
    a(f"s_lshl_b32 s98, s2, 6")
    a(f"s_add_u32 s98, s98, {200<<20}")
    a(f"v_mov_b32 v{vtmp+4}, s98")
    for q in range(4):
        for j in range(4):
            a(f"v_mov_b32 v{vtmp+j}, s{80+4*q+j}")
        a(f"buffer_store_dwordx4 v[{vtmp}:{vtmp+3}], v{vtmp+4}, s[{ws_srd}:{ws_srd+3}], 0 offen offset:{16*q}")
        a("s_nop 2")
    a.label(l)
    a("s_mov_b64 exec, s[96:97]")
```

```python
import sys
from asmlib import *

ASLOT = 16384
WPITCH = 1056
WSLOT = 32 * WPITCH
WBASE = 3 * ASLOT
TBL = WBASE + 3 * WSLOT
LDS_BYTES = TBL + 4 * 2048

V_TID, V_LANE = 0, 1
V_GE, V_GO, V_WL = 2, 3, 4
V_AR0, V_AR1, V_WP, V_WM = 5, 6, 7, 8
V_TB = 9
V_T0, V_T1, V_T2, V_T3 = 10, 11, 12, 13
V_GA = 14
V_IDX = 20
V_I8 = 32
V_Z = 40
F0A, F0W, F1A, F1W = 64, 80, 112, 128
NV = 160

def main_kernel(stamps=False):
    a = Asm()
    a("s_cmp_ge_u32 s2, 256")
    a("s_cbranch_scc1 L_end")
    if stamps:
        stamp_init(a); stamp(a, 0)
    a("""s_load_dwordx4 s[4:7], s[0:1], 0
    s_load_dwordx2 s[8:9], s[0:1], 40
    s_load_dwordx2 s[10:11], s[0:1], 88
    s_getpc_b64 s[28:29]
    L_pc:
    v_lshrrev_b32 v10, 6, v0
    v_and_b32 v1, 63, v0
    s_and_b32 s31, s2, 7
    v_readfirstlane_b32 s30, v10
    s_lshr_b32 s32, s2, 3""")
    a("""s_mul_i32 s33, s31, 25
    s_and_b32 s35, s31, 1
    s_add_u32 s33, s33, 1
    s_lshr_b32 s33, s33, 1
    s_add_u32 s34, s33, 12
    s_sub_u32 s37, s33, 1
    s_cmp_eq_u32 s35, 1
    s_cselect_b32 s34, s37, s34
    s_mul_i32 s36, s32, 43
    s_lshr_b32 s36, s36, 9
    s_mul_i32 s36, s36, 12
    s_sub_u32 s36, s32, s36""")
    a(f"""v_and_b32 v10, 7, v1
    v_lshrrev_b32 v11, 4, v1
    v_xor_b32 v12, v10, v11
    v_lshlrev_b32 v{V_GE}, 4, v12
    v_xor_b32 v{V_GO}, 64, v{V_GE}
    v_lshrrev_b32 v11, 5, v1
    v_and_b32 v12, 31, v1
    v_lshlrev_b32 v13, 2, v11
    v_xor_b32 v12, v12, v13
    v_lshlrev_b32 v12, 4, v12
    v_lshl_add_u32 v{V_WL}, v11, 9, v12""")
    a(f"""v_add_u32 v11, s36, v10
    v_subrev_u32 v12, 12, v11
    v_min_u32 v11, v11, v12
    v_add_u32 v11, s33, v11
    v_add_u32 v12, s36, v10
    v_add_u32 v12, 8, v12
    v_subrev_u32 v13, 12, v12
    v_min_u32 v12, v12, v13
    v_add_u32 v12, s33, v12
    v_mov_b32 v13, s34
    v_cmp_gt_u32 vcc, 4, v10
    s_lshl_b32 s37, s32, 7
    s_lshl_b32 s38, s30, 5
    v_cndmask_b32 v12, v13, v12, vcc
    s_add_u32 s37, s37, s38
    v_lshrrev_b32 v13, 3, v1
    v_add_u32 v13, s37, v13
    v_mul_u32_u24 v13, 400, v13
    v_lshl_add_u32 v11, v11, 2, v13
    v_lshl_add_u32 v12, v12, 2, v13
    v_lshlrev_b32 v14, 7, v1
    v_min_u32 v14, L_end-L_pc, v14
    s_waitcnt lgkmcnt(0)""")
    srd(a, 12, 4, 4096*100*4)
    srd(a, 16, 6, 100000*128)
    srd(a, 20, 8, 6400*512)
    srd(a, 24, 10, 0x10000000)
    for o in range(4):
        a(f"s_movk_i32 s39, {o*3200}")
        a(f"buffer_load_dword v{V_I8+o}, v11, s[12:15], s39 offen")
        a(f"buffer_load_dword v{V_I8+4+o}, v12, s[12:15], s39 offen")
    a("global_load_dword v44, v14, s[28:29]")
    a(f"""s_mov_b32 s40, s36
    s_lshl_b32 s44, s30, 10
    s_mul_i32 s42, s30, {WPITCH}
    s_add_u32 s42, s42, {WBASE}
    s_lshl_b32 s43, s30, 12""")
    def w_off_full():
        a("""s_add_u32 s41, s33, s40
        s_lshl_b32 s41, s41, 15
        s_add_u32 s41, s41, s44
        s_add_u32 s40, s40, 1
        s_cmp_eq_u32 s40, 12
        s_cselect_b32 s40, 0, s40""")
    def w_piece(i):
        return [f"s_add_u32 m0, s42, {i*4*WPITCH}",
                f"s_add_u32 s45, s41, {i*4096}",
                f"buffer_load_dwordx4 v{V_WL}, s[20:23], s45 offen lds"]
    def a_piece(o, vidx):
        return [f"s_add_u32 m0, s43, {o*1024}",
                f"v_lshl_add_u32 v{V_GA+o}, v{vidx+o}, 7, v{V_GE if o % 2 == 0 else V_GO}",
                f"buffer_load_dwordx4 v{V_GA+o}, s[16:19], 0 offen lds"]
    w_off_full()
    for i in range(8):
        for l in w_piece(i): a(l)
    a(f"""v_and_b32 v10, 15, v1
    v_lshrrev_b32 v11, 4, v1
    v_lshrrev_b32 v12, 1, v1
    v_and_b32 v12, 7, v12
    v_xor_b32 v12, v11, v12
    v_lshlrev_b32 v12, 4, v12
    v_lshl_add_u32 v12, v10, 7, v12
    s_lshr_b32 s46, s30, 1
    s_lshl_b32 s46, s46, 13
    v_add_u32 v{V_AR0}, s46, v12
    v_xor_b32 v{V_AR1}, 64, v{V_AR0}""")
    a(f"""v_lshrrev_b32 v12, 3, v10
    v_lshl_add_u32 v12, v11, 2, v12
    v_mul_u32_u24 v12, {WPITCH}, v12
    v_bfe_u32 v13, v10, 2, 1
    v_lshl_add_u32 v12, v13, 9, v12
    v_and_b32 v10, 3, v10
    v_lshl_add_u32 v12, v10, 3, v12
    s_and_b32 s46, s30, 1
    s_lshl_b32 s46, s46, 8
    s_add_u32 s46, s46, {WBASE}
    v_add_u32 v12, s46, v12
    v_lshlrev_b32 v13, 6, v13
    v_add_u32 v{V_WP}, v12, v13
    v_sub_u32 v{V_WM}, v12, v13""")
    a(f"""s_lshl_b32 s46, s30, 11
    s_add_u32 s46, s46, {TBL}
    v_lshrrev_b32 v10, 3, v1
    v_lshlrev_b32 v10, 4, v10
    v_add_u32 v{V_TB}, s46, v10
    v_and_b32 v11, 7, v1
    v_lshl_add_u32 v11, v11, 7, v{V_TB}
    v_mov_b32 v{V_Z}, 0
    v_mov_b32 v{V_Z+1}, 0
    v_mov_b32 v{V_Z+2}, 0
    v_mov_b32 v{V_Z+3}, 0
    s_nop 1""")
    for i in range(8):
        a(f"v_mfma_f32_32x32x16_bf16 a[{16*i}:{16*i+15}], v[{V_Z}:{V_Z+3}], v[{V_Z}:{V_Z+3}], 0")
    a("s_waitcnt vmcnt(9)")
    if stamps: stamp(a, 1)
    a(f"""ds_write_b128 v11, v[{V_I8}:{V_I8+3}]
    ds_write_b128 v11, v[{V_I8+4}:{V_I8+7}] offset:1024
    s_waitcnt lgkmcnt(0)
    ds_read_b128 v[{V_IDX}:{V_IDX+3}], v{V_TB}
    ds_read_b128 v[{V_IDX+4}:{V_IDX+7}], v{V_TB} offset:128
    ds_read_b128 v[{V_IDX+8}:{V_IDX+11}], v{V_TB} offset:256
    v_add_u32 v{V_TB}, 384, v{V_TB}
    s_waitcnt lgkmcnt(2)""")
    for o in range(4):
        for l in a_piece(o, V_IDX): a(l)
    a(f"s_add_u32 s43, s43, {ASLOT}")
    a(f"s_add_u32 s42, s42, {WSLOT}")
    a("s_waitcnt lgkmcnt(1)")
    for o in range(4):
        for l in a_piece(o, V_IDX+4): a(l)
    w_off_full()
    for i in range(8):
        for l in w_piece(i): a(l)
    a(f"s_add_u32 s43, s43, {ASLOT}")
    a(f"s_add_u32 s42, s42, {WSLOT}")
    a("s_waitcnt lgkmcnt(0)")
    for o in range(4):
        for l in a_piece(o, V_IDX+8): a(l)
    w_off_full()
    for i in range(8):
        for l in w_piece(i): a(l)
    a(f"s_sub_u32 s43, s43, {2*ASLOT}")
    a(f"s_sub_u32 s42, s42, {2*WSLOT}")
    def reads(FA, FW, var, j):
        r = []
        for rb in range(4):
            r.append(f"ds_read_b128 v[{FA+4*rb}:{FA+4*rb+3}], v{var} offset:{rb*2048}")
        for cb in range(8):
            base = V_WP if (cb & 2) == 0 else V_WM
            for h in range(2):
                r.append(f"ds_read_b64_tr_b16 v[{FW+4*cb+2*h}:{FW+4*cb+2*h+1}], v{base} offset:{j*16*WPITCH + h*2*WPITCH + 32*cb}")
        return r
    def mfmas(FA, FW):
        m = []
        for cb in range(8):
            for rb in range(4):
                ac = (rb*8+cb)*4
                m.append(f"v_mfma_f32_16x16x32_bf16 a[{ac}:{ac+3}], v[{FW+4*cb}:{FW+4*cb+3}], v[{FA+4*rb}:{FA+4*rb+3}], a[{ac}:{ac+3}]")
        return m
    def interleave(ms, fill, per=2):
        fill = list(fill)
        for m in ms:
            a(m)
            for _ in range(per):
                if fill: a(fill.pop(0))
        for f in fill: a(f)
    a("s_waitcnt vmcnt(24)")
    a("s_barrier")
    if stamps: stamp(a, 2)
    for r in reads(F0A, F0W, V_AR0, 0): a(r)
    a("s_mov_b32 s47, 0")
    a("s_mov_b32 s48, 0")
    a(f"s_mov_b32 s53, {ASLOT}")
    a(f"s_mov_b32 s54, {WSLOT}")
    a.label("L_loop")
    a("s_waitcnt lgkmcnt(0)")
    fill = [f"ds_read_b128 v[{V_IDX}:{V_IDX+3}], v{V_TB}"] + reads(F1A, F1W, V_AR1, 1)
    fill += [f"v_add_u32 v{V_TB}, 128, v{V_TB}",
             "s_add_u32 s48, s48, 1",
             "s_cmp_eq_u32 s48, 3",
             f"s_cselect_b32 s49, {(-2*ASLOT) & 0xffffffff}, s53",
             f"s_cselect_b32 s50, {(-2*WSLOT) & 0xffffffff}, s54",
             "s_cselect_b32 s48, 0, s48",
             f"v_add_u32 v{V_AR0}, s49, v{V_AR0}",
             f"v_add_u32 v{V_AR1}, s49, v{V_AR1}",
             f"v_add_u32 v{V_WP}, s50, v{V_WP}",
             f"v_add_u32 v{V_WM}, s50, v{V_WM}",
             "s_lshl_b32 s51, s35, 6",
             "s_cmp_eq_u32 s47, 11",
             "s_cselect_b32 s51, s51, 0",
             f"v_xor_b32 v{V_AR0}, s51, v{V_AR0}",
             "s_add_u32 s41, s33, s40",
             "s_lshl_b32 s41, s41, 15",
             "s_lshl_b32 s51, s34, 15",
             "s_lshl_b32 s52, s35, 14",
             "s_add_u32 s51, s51, s52",
             "s_cmp_eq_u32 s47, 9",
             "s_cselect_b32 s41, s51, s41",
             "s_add_u32 s41, s41, s44",
             "s_add_u32 s40, s40, 1",
             "s_cmp_eq_u32 s40, 12",
             "s_cselect_b32 s40, 0, s40"]
    interleave(mfmas(F0A, F0W), fill, per=2)
    a("""s_cmp_lt_u32 s47, 10
    s_cbranch_scc1 L_w12
    s_cmp_eq_u32 s47, 10
    s_cbranch_scc1 L_w8
    s_waitcnt vmcnt(0)
    s_branch L_wd""")
    a.label("L_w8")
    a("s_waitcnt vmcnt(8)")
    a("s_branch L_wd")
    a.label("L_w12")
    a("s_waitcnt vmcnt(12)")
    a.label("L_wd")
    a("s_waitcnt lgkmcnt(0)")
    a("s_barrier")
    ms = mfmas(F1A, F1W)
    rd = reads(F0A, F0W, V_AR0, 0)
    interleave(ms[:10], rd, per=2)
    a("s_cmp_gt_u32 s47, 9")
    a("s_cbranch_scc1 L_nodma")
    fill = []
    for o in range(4): fill += a_piece(o, V_IDX)
    for i in range(4): fill += w_piece(i)
    interleave(ms[10:22], fill, per=2)
    a("s_cmp_eq_u32 s47, 9")
    a("s_cbranch_scc1 L_nodma2")
    fill = []
    for i in range(4, 8): fill += w_piece(i)
    interleave(ms[22:28], fill, per=2)
    a("s_branch L_join")
    a.label("L_nodma")
    for m in ms[10:22]: a(m)
    a.label("L_nodma2")
    for m in ms[22:28]: a(m)
    a.label("L_join")
    fill = ["s_add_u32 s43, s43, s49", "s_add_u32 s42, s42, s50", "s_add_u32 s47, s47, 1", "s_cmp_lt_u32 s47, 12"]
    interleave(ms[28:], fill, per=1)
    a("s_cbranch_scc1 L_loop")
    a("s_waitcnt lgkmcnt(0)")
    for m in mfmas(F0A, F0W): a(m)
    if stamps: stamp(a, 3)
    a("""s_lshl_b32 s46, s32, 3
    s_lshr_b32 s49, s30, 1
    s_lshl_b32 s49, s49, 2
    s_add_u32 s46, s46, s49
    s_lshl_b32 s46, s46, 3
    s_add_u32 s46, s46, s31
    s_lshl_b32 s46, s46, 14
    s_and_b32 s49, s30, 1
    s_lshl_b32 s49, s49, 13
    s_add_u32 s46, s46, s49
    v_lshlrev_b32 v10, 4, v1
    v_add_u32 v11, 4096, v10
    s_nop 4""")
    for rb in range(4):
        for cb in range(8):
            ac = (rb*8+cb)*4
            a(f"buffer_store_dwordx4 a[{ac}:{ac+3}], v{10 if cb < 4 else 11}, s[24:27], s46 offen offset:{(cb%4)*1024}")
        if rb < 3: a(f"s_add_u32 s46, s46, {8*16384}")
    if stamps:
        a("s_waitcnt vmcnt(0)")
        stamp(a, 4)
        a("v_mov_b32 v5, v0")
        stamp_store(a, 24, vtmp=0) if False else None
        a("v_mov_b32 v25, v0")
        stamp_store(a, 24, vtmp=20)
    a.label("L_end")
    return a.text()

def bf16r(a, dst, src, tmp=None):
    a(f"v_cvt_pk_bf16_f32 v{dst}, v{src}, v{src}")
    a(f"v_lshlrev_b32 v{dst}, 16, v{dst}")

def reduce_kernel():
    a = Asm()
    a("s_cmp_ge_u32 s2, 256")
    a("s_cbranch_scc1 R_end")
    a("""s_load_dwordx4 s[4:7], s[0:1], 16
    s_load_dwordx2 s[8:9], s[0:1], 32
    s_load_dwordx8 s[36:43], s[0:1], 48
    s_load_dwordx2 s[10:11], s[0:1], 88
    v_lshrrev_b32 v10, 6, v0
    v_and_b32 v1, 63, v0
    v_lshlrev_b32 v2, 4, v1
    v_readfirstlane_b32 s30, v10
    s_lshl_b32 s31, s2, 17
    s_waitcnt lgkmcnt(0)""")
    srd(a, 12, 10, 0x10000000)
    srd(a, 16, 4, 4096*13*2)
    srd(a, 20, 6, 26)
    srd(a, 24, 36, 512)
    srd(a, 44, 38, 512)
    srd(a, 48, 42, 8192)
    srd(a, 52, 8, 2)
    srd(a, 56, 40, 2)
    a("""s_lshl_b32 s32, s30, 12
    s_add_u32 s31, s31, s32""")
    for src in range(8):
        for cb in range(4):
            r = 32 + (src*4+cb)*4
            a(f"buffer_load_dwordx4 v[{r}:{r+3}], v2, s[12:15], s31 offen offset:{cb*1024}")
        a("s_add_u32 s31, s31, 16384")
    a("""v_lshrrev_b32 v3, 4, v1
    v_lshlrev_b32 v4, 3, v3
    s_lshl_b32 s32, s30, 7""")
    for cb in range(4):
        a(f"buffer_load_dwordx2 v[{12+2*cb}:{13+2*cb}], v4, s[24:27], s32 offen offset:{cb*32}")
        a(f"buffer_load_dwordx2 v[{20+2*cb}:{21+2*cb}], v4, s[44:47], s32 offen offset:{cb*32}")
    a("""v_and_b32 v5, 15, v1
    s_lshl_b32 s33, s2, 4
    v_add_u32 v6, s33, v5
    v_mul_u32_u24 v7, 26, v6
    v_lshl_add_u32 v7, v3, 1, v7
    v_lshlrev_b32 v8, 1, v3
    v_mov_b32 v9, 0""")
    for q in range(4):
        a(f"buffer_load_ushort v{160+q}, v7, s[16:19], 0 offen offset:{q*8}")
        a(f"buffer_load_ushort v{164+q}, v8, s[20:23], 0 offen offset:{q*8}")
    a("buffer_load_ushort v168, v9, s[52:55], 0 offen")
    a("buffer_load_ushort v169, v9, s[56:59], 0 offen")
    a("s_waitcnt vmcnt(0)")
    for src in range(1, 8):
        for e in range(16):
            a(f"v_add_f32 v{32+e}, v{32+e}, v{32+src*16+e}")
    a("v_mov_b32 v28, 0")
    for cb in range(4):
        for r in range(4):
            e = cb*4 + r
            bsrc = 12 + 2*cb + r//2
            wsrc = 20 + 2*cb + r//2
            bf16r(a, 32+e, 32+e)
            if r % 2 == 0:
                a(f"v_lshlrev_b32 v29, 16, v{bsrc}")
                a(f"v_lshlrev_b32 v30, 16, v{wsrc}")
            else:
                a(f"v_and_b32 v29, 0xffff0000, v{bsrc}")
                a(f"v_and_b32 v30, 0xffff0000, v{wsrc}")
            a(f"v_add_f32 v{32+e}, v{32+e}, v29")
            bf16r(a, 32+e, 32+e)
            a(f"v_cmp_lt_f32 vcc, 0, v{32+e}")
            a("s_nop 1")
            a(f"v_cndmask_b32 v29, 0, 1.0, vcc")
            a(f"v_mul_f32 v{32+e}, v{32+e}, v29")
            a(f"v_fmac_f32 v28, v{32+e}, v30")
    a("v_mov_b32 v31, 0")
    for q in range(4):
        a(f"v_lshlrev_b32 v{160+q}, 16, v{160+q}")
        a(f"v_lshlrev_b32 v{164+q}, 16, v{164+q}")
    a("v_cmp_eq_u32 vcc, 0, v3")
    a("s_nop 1")
    a("v_cndmask_b32 v163, 0, v163, vcc")
    for q in range(4):
        a(f"v_fmac_f32 v31, v{160+q}, v{164+q}")
    a("""v_xor_b32 v10, 16, v1
    v_lshlrev_b32 v10, 2, v10
    v_xor_b32 v11, 32, v1
    v_lshlrev_b32 v11, 2, v11
    ds_bpermute_b32 v29, v10, v28
    ds_bpermute_b32 v30, v10, v31
    s_waitcnt lgkmcnt(0)
    v_add_f32 v28, v28, v29
    v_add_f32 v31, v31, v30
    ds_bpermute_b32 v29, v11, v28
    ds_bpermute_b32 v30, v11, v31
    s_waitcnt lgkmcnt(0)
    v_add_f32 v28, v28, v29
    v_add_f32 v31, v31, v30
    s_lshl_b32 s32, s30, 6
    v_lshlrev_b32 v10, 2, v5
    v_add_u32 v11, s32, v10
    ds_write_b32 v11, v28
    s_waitcnt lgkmcnt(0)
    s_barrier
    s_cmp_lg_u32 s30, 0
    s_cbranch_scc1 R_end
    ds_read_b32 v32, v10
    ds_read_b32 v33, v10 offset:64
    ds_read_b32 v34, v10 offset:128
    ds_read_b32 v35, v10 offset:192
    v_lshlrev_b32 v168, 16, v168
    v_lshlrev_b32 v169, 16, v169
    s_waitcnt lgkmcnt(0)
    v_add_f32 v32, v32, v33
    v_add_f32 v34, v34, v35
    v_add_f32 v32, v32, v34""")
    bf16r(a, 32, 32)
    a("v_add_f32 v32, v32, v169")
    bf16r(a, 32, 32)
    bf16r(a, 31, 31)
    a("v_add_f32 v31, v31, v168")
    bf16r(a, 31, 31)
    a("v_add_f32 v32, v31, v32")
    bf16r(a, 32, 32)
    a("""v_mul_f32 v32, 0xbfb8aa3b, v32
    v_exp_f32 v32, v32
    s_nop 0
    v_add_f32 v32, 1.0, v32
    v_rcp_f32 v32, v32
    s_nop 0
    v_cvt_pk_bf16_f32 v32, v32, v32
    v_lshlrev_b32 v6, 1, v6
    v_cmp_gt_u32 vcc, 16, v1
    s_and_saveexec_b64 s[60:61], vcc
    buffer_store_short v32, v6, s[48:51], 0 offen""")
    a.label("R_end")
    return a.text()

def build(stamps=False):
    return file_text([f"; @launch kernel={KNAME} grid=(256,1,1) block=(256,1,1) lds={LDS_BYTES}",
                      f"; @launch kernel=reduce_kernel grid=(256,1,1) block=(256,1,1) lds=1024"],
                     [(KNAME, main_kernel(stamps), NV + 128, 102, NV), ("reduce_kernel", reduce_kernel(), 176, 102, 176)])

if __name__ == "__main__":
    open("v1.s", "w").write(build(False))
    open("v1s.s", "w").write(build(True))
```

```python
import sys
from asmlib import *

ASLOT = 16384
WPITCH = 1056
WSLOT = 32 * WPITCH
WBASE = 3 * ASLOT
TBL = WBASE + 3 * WSLOT
RED = TBL + 4 * 2048
LDS_BYTES = RED + 512
FLAGBASE = 16 << 20

V_AR0, V_AR1, V_WP, V_WM = 5, 6, 7, 8
V_Z = 12
F0A, F0W, F1A, F1W = 32, 48, 80, 96
NV = 128
V_GE, V_GO, V_WL, V_TB = 2, 3, 4, 9
V_GA = 14
V_IDX = 20
V_I8 = 32

def bf16r(a, dst, src):
    a(f"v_cvt_pk_bf16_f32 v{dst}, v{src}, v{src}")
    a(f"v_lshlrev_b32 v{dst}, 16, v{dst}")

def kernel(stamps=False):
    a = Asm()
    a("s_cmp_ge_u32 s2, 256")
    a("s_cbranch_scc1 L_end")
    if stamps:
        stamp_init(a); stamp(a, 0)
    a("""s_load_dwordx4 s[4:7], s[0:1], 0
    s_load_dwordx2 s[8:9], s[0:1], 40
    s_load_dwordx4 s[56:59], s[0:1], 80
    s_getpc_b64 s[28:29]
    L_pc:
    v_lshrrev_b32 v10, 6, v0
    v_and_b32 v1, 63, v0
    s_and_b32 s31, s2, 7
    v_readfirstlane_b32 s55, v10
    s_lshr_b32 s32, s2, 3
    s_and_b32 s35, s31, 1
    s_nop 1
    s_and_b32 s30, s55, 3
    s_cmp_ge_u32 s55, 4
    s_cbranch_scc0 L_mfma""")
    a("""s_mul_i32 s33, s31, 25
    s_add_u32 s33, s33, 1
    s_lshr_b32 s33, s33, 1
    s_add_u32 s34, s33, 12
    s_sub_u32 s37, s33, 1
    s_cmp_eq_u32 s35, 1
    s_cselect_b32 s34, s37, s34
    s_mul_i32 s36, s32, 43
    s_lshr_b32 s36, s36, 9
    s_mul_i32 s36, s36, 12
    s_sub_u32 s36, s32, s36""")
    a(f"""v_and_b32 v10, 7, v1
    v_add_u32 v11, s36, v10
    v_subrev_u32 v12, 12, v11
    v_min_u32 v11, v11, v12
    v_add_u32 v11, s33, v11
    v_add_u32 v12, s36, v10
    v_add_u32 v12, 8, v12
    v_subrev_u32 v13, 12, v12
    v_min_u32 v12, v12, v13
    v_add_u32 v12, s33, v12
    v_mov_b32 v13, s34
    v_cmp_gt_u32 vcc, 4, v10
    s_lshl_b32 s37, s32, 7
    s_lshl_b32 s38, s30, 5
    v_cndmask_b32 v12, v13, v12, vcc
    s_add_u32 s37, s37, s38
    v_lshrrev_b32 v13, 3, v1
    v_add_u32 v13, s37, v13
    v_mul_u32_u24 v13, 400, v13
    v_lshl_add_u32 v11, v11, 2, v13
    v_lshl_add_u32 v12, v12, 2, v13
    v_lshlrev_b32 v14, 7, v1
    v_min_u32 v14, L_end-L_pc, v14
    s_waitcnt lgkmcnt(0)""")
    srd(a, 12, 4, 4096*100*4)
    for o in range(4):
        a(f"s_movk_i32 s39, {o*3200}")
        a(f"buffer_load_dword v{V_I8+o}, v11, s[12:15], s39 offen")
        a(f"buffer_load_dword v{V_I8+4+o}, v12, s[12:15], s39 offen")
    a("global_load_dword v44, v14, s[28:29]")
    srd(a, 16, 6, 100000*128)
    srd(a, 20, 8, 6400*512)
    srd(a, 24, 58, 0x10000000)
    a(f"""v_lshrrev_b32 v11, 5, v1
    v_and_b32 v12, 31, v1
    v_lshlrev_b32 v13, 2, v11
    v_xor_b32 v12, v12, v13
    v_lshlrev_b32 v12, 4, v12
    v_lshl_add_u32 v{V_WL}, v11, 9, v12
    s_mov_b32 s40, s36
    s_lshl_b32 s44, s30, 10
    s_mul_i32 s42, s30, {WPITCH}
    s_add_u32 s42, s42, {WBASE}
    s_lshl_b32 s43, s30, 12""")
    def w_off_full():
        a("""s_add_u32 s41, s33, s40
        s_lshl_b32 s41, s41, 15
        s_add_u32 s41, s41, s44
        s_add_u32 s40, s40, 1
        s_cmp_eq_u32 s40, 12
        s_cselect_b32 s40, 0, s40""")
    def w_piece(i, extra=0):
        a(f"s_add_u32 m0, s42, {i*4*WPITCH + extra}")
        a(f"s_add_u32 s45, s41, {i*4096}")
        a(f"buffer_load_dwordx4 v{V_WL}, s[20:23], s45 offen lds")
    def a_piece(o, vidx, extra=0):
        a(f"s_add_u32 m0, s43, {o*1024 + extra}")
        a(f"v_lshl_add_u32 v{V_GA+o}, v{vidx+o}, 7, v{V_GE if o % 2 == 0 else V_GO}")
        a(f"buffer_load_dwordx4 v{V_GA+o}, s[16:19], 0 offen lds")
    a("s_mov_b32 s47, 0")
    a.label("L_pw")
    w_off_full()
    for i in range(8): w_piece(i)
    a(f"""s_add_u32 s42, s42, {WSLOT}
    s_add_u32 s47, s47, 1
    s_cmp_lt_u32 s47, 3
    s_cbranch_scc1 L_pw
    s_sub_u32 s42, s42, {3*WSLOT}""")
    a(f"""v_lshrrev_b32 v11, 4, v1
    v_xor_b32 v12, v10, v11
    v_lshlrev_b32 v{V_GE}, 4, v12
    v_xor_b32 v{V_GO}, 64, v{V_GE}
    s_lshl_b32 s46, s30, 11
    s_add_u32 s46, s46, {TBL}
    v_lshrrev_b32 v11, 3, v1
    v_lshlrev_b32 v11, 4, v11
    v_add_u32 v{V_TB}, s46, v11
    v_lshl_add_u32 v11, v10, 7, v{V_TB}
    s_waitcnt vmcnt(25)""")
    if stamps: stamp(a, 1)
    a(f"""ds_write_b128 v11, v[{V_I8}:{V_I8+3}]
    ds_write_b128 v11, v[{V_I8+4}:{V_I8+7}] offset:1024
    s_waitcnt lgkmcnt(0)
    ds_read_b128 v[{V_IDX}:{V_IDX+3}], v{V_TB}
    ds_read_b128 v[{V_IDX+4}:{V_IDX+7}], v{V_TB} offset:128
    ds_read_b128 v[{V_IDX+8}:{V_IDX+11}], v{V_TB} offset:256
    v_add_u32 v{V_TB}, 384, v{V_TB}
    s_waitcnt lgkmcnt(2)""")
    for o in range(4): a_piece(o, V_IDX)
    a("s_waitcnt lgkmcnt(1)")
    for o in range(4): a_piece(o, V_IDX+4, ASLOT)
    a("s_waitcnt lgkmcnt(0)")
    for o in range(4): a_piece(o, V_IDX+8, 2*ASLOT)
    a(f"""ds_read_b128 v[{V_IDX}:{V_IDX+3}], v{V_TB}
    v_add_u32 v{V_TB}, 128, v{V_TB}
    s_mov_b32 s47, 0
    s_mov_b32 s48, 0
    s_mov_b32 s53, {ASLOT}
    s_mov_b32 s54, {WSLOT}
    s_waitcnt vmcnt(8)
    s_barrier
    s_waitcnt vmcnt(4)""")
    a.label("L_lloop")
    a("s_barrier")
    a("""s_add_u32 s41, s33, s40
    s_lshl_b32 s41, s41, 15
    s_lshl_b32 s51, s34, 15
    s_lshl_b32 s52, s35, 14
    s_add_u32 s51, s51, s52
    s_cmp_eq_u32 s47, 9
    s_cselect_b32 s41, s51, s41
    s_add_u32 s41, s41, s44
    s_add_u32 s40, s40, 1
    s_cmp_eq_u32 s40, 12
    s_cselect_b32 s40, 0, s40
    s_waitcnt lgkmcnt(0)""")
    for o in range(4): a_piece(o, V_IDX)
    a(f"""ds_read_b128 v[{V_IDX}:{V_IDX+3}], v{V_TB}
    v_add_u32 v{V_TB}, 128, v{V_TB}""")
    for i in range(4): w_piece(i)
    a("s_cmp_eq_u32 s47, 9")
    a("s_cbranch_scc1 L_ldone")
    for i in range(4, 8): w_piece(i)
    a(f"""s_add_u32 s48, s48, 1
    s_cmp_eq_u32 s48, 3
    s_cselect_b32 s49, {(-2*ASLOT) & 0xffffffff}, s53
    s_cselect_b32 s50, {(-2*WSLOT) & 0xffffffff}, s54
    s_cselect_b32 s48, 0, s48
    s_add_u32 s43, s43, s49
    s_add_u32 s42, s42, s50
    s_add_u32 s47, s47, 1
    s_waitcnt vmcnt(12)
    s_branch L_lloop""")
    a.label("L_ldone")
    a("""s_waitcnt vmcnt(8)
    s_barrier
    s_waitcnt vmcnt(0)
    s_barrier
    s_branch L_tail""")
    a.label("L_mfma")
    a(f"""v_and_b32 v10, 15, v1
    v_lshrrev_b32 v11, 4, v1
    v_lshrrev_b32 v12, 1, v1
    v_and_b32 v12, 7, v12
    v_xor_b32 v12, v11, v12
    v_lshlrev_b32 v12, 4, v12
    v_lshl_add_u32 v12, v10, 7, v12
    s_lshr_b32 s46, s30, 1
    s_lshl_b32 s46, s46, 13
    v_add_u32 v{V_AR0}, s46, v12
    v_xor_b32 v{V_AR1}, 64, v{V_AR0}
    v_lshrrev_b32 v12, 3, v10
    v_lshl_add_u32 v12, v11, 2, v12
    v_mul_u32_u24 v12, {WPITCH}, v12
    v_bfe_u32 v13, v10, 2, 1
    v_lshl_add_u32 v12, v13, 9, v12
    v_and_b32 v10, 3, v10
    v_lshl_add_u32 v12, v10, 3, v12
    s_and_b32 s46, s30, 1
    s_lshl_b32 s46, s46, 8
    s_add_u32 s46, s46, {WBASE}
    v_add_u32 v12, s46, v12
    v_lshlrev_b32 v13, 6, v13
    v_add_u32 v{V_WP}, v12, v13
    v_sub_u32 v{V_WM}, v12, v13
    v_mov_b32 v{V_Z}, 0
    v_mov_b32 v{V_Z+1}, 0
    v_mov_b32 v{V_Z+2}, 0
    v_mov_b32 v{V_Z+3}, 0
    s_waitcnt lgkmcnt(0)""")
    srd(a, 24, 58, 0x10000000)
    srd(a, 60, 56, 256)
    for i in range(8):
        a(f"v_mfma_f32_32x32x16_bf16 a[{16*i}:{16*i+15}], v[{V_Z}:{V_Z+3}], v[{V_Z}:{V_Z+3}], 0")
    a(f"""s_cmp_lg_u32 s30, 0
    s_cbranch_scc1 L_noinit
    s_lshl_b32 s46, s2, 7
    s_add_u32 s46, s46, {FLAGBASE}
    v_lshlrev_b32 v10, 2, v1
    s_mov_b64 exec, 0xffff
    buffer_store_dword v{V_Z}, v10, s[24:27], s46 offen sc1
    s_waitcnt vmcnt(0)
    s_mov_b64 exec, 1
    v_mov_b32 v11, 1
    s_lshl_b32 s46, s32, 3
    buffer_atomic_add v11, v{V_Z}, s[60:63], s46 offen
    s_mov_b64 exec, -1""")
    a.label("L_noinit")
    def reads(FA, FW, var, j):
        r = []
        for rb in range(4):
            r.append(f"ds_read_b128 v[{FA+4*rb}:{FA+4*rb+3}], v{var} offset:{rb*2048}")
        for cb in range(8):
            base = V_WP if (cb & 2) == 0 else V_WM
            for h in range(2):
                r.append(f"ds_read_b64_tr_b16 v[{FW+4*cb+2*h}:{FW+4*cb+2*h+1}], v{base} offset:{j*16*WPITCH + h*2*WPITCH + 32*cb}")
        return r
    def mfmas(FA, FW):
        m = []
        for cb in range(8):
            for rb in range(4):
                ac = (rb*8+cb)*4
                m.append(f"v_mfma_f32_16x16x32_bf16 a[{ac}:{ac+3}], v[{FW+4*cb}:{FW+4*cb+3}], v[{FA+4*rb}:{FA+4*rb+3}], a[{ac}:{ac+3}]")
        return m
    def interleave(ms, fill, per=2):
        fill = list(fill)
        for m in ms:
            a(m)
            for _ in range(per):
                if fill: a(fill.pop(0))
        for f in fill: a(f)
    a(f"""s_mov_b32 s47, 0
    s_mov_b32 s48, 0
    s_mov_b32 s53, {ASLOT}
    s_mov_b32 s54, {WSLOT}
    s_lshl_b32 s52, s35, 6
    s_barrier""")
    if stamps: stamp(a, 2)
    for r in reads(F0A, F0W, V_AR0, 0): a(r)
    a.label("L_loop")
    a("s_waitcnt lgkmcnt(0)")
    fill = reads(F1A, F1W, V_AR1, 1)
    fill += ["s_add_u32 s48, s48, 1",
             "s_cmp_eq_u32 s48, 3",
             f"s_cselect_b32 s49, {(-2*ASLOT) & 0xffffffff}, s53",
             f"s_cselect_b32 s50, {(-2*WSLOT) & 0xffffffff}, s54",
             "s_cselect_b32 s48, 0, s48",
             f"v_add_u32 v{V_AR0}, s49, v{V_AR0}",
             f"v_add_u32 v{V_AR1}, s49, v{V_AR1}",
             f"v_add_u32 v{V_WP}, s50, v{V_WP}",
             f"v_add_u32 v{V_WM}, s50, v{V_WM}",
             "s_cmp_eq_u32 s47, 11",
             "s_cselect_b32 s51, s52, 0",
             f"v_xor_b32 v{V_AR0}, s51, v{V_AR0}"]
    interleave(mfmas(F0A, F0W), fill, per=1)
    a("s_waitcnt lgkmcnt(0)")
    a("s_barrier")
    fill = reads(F0A, F0W, V_AR0, 0) + ["s_add_u32 s47, s47, 1", "s_cmp_lt_u32 s47, 12"]
    interleave(mfmas(F1A, F1W), fill, per=1)
    a("s_cbranch_scc1 L_loop")
    a(f"""s_lshl_b32 s46, s32, 3
    buffer_load_dword v16, v{V_Z}, s[60:63], s46 offen sc1
    s_waitcnt lgkmcnt(0)""")
    for m in mfmas(F0A, F0W): a(m)
    if stamps: stamp(a, 3)
    a("""s_lshl_b32 s46, s32, 3
    s_lshr_b32 s49, s30, 1
    s_lshl_b32 s49, s49, 2
    s_add_u32 s46, s46, s49
    s_lshl_b32 s50, s46, 7
    s_lshl_b32 s46, s46, 3
    s_add_u32 s46, s46, s31
    s_lshl_b32 s46, s46, 13
    s_and_b32 s49, s30, 1
    s_lshl_b32 s51, s49, 12
    s_add_u32 s46, s46, s51
    v_lshlrev_b32 v10, 4, v1""")
    t = 32
    for rb in range(4):
        for q in range(4):
            tb = 32 + ((rb*4+q) % 8) * 12
            for e in range(8):
                a(f"v_accvgpr_read_b32 v{tb+e}, a{(rb*8+2*q)*4+e}")
            for e in range(4):
                a(f"v_cvt_pk_bf16_f32 v{tb+8+e}, v{tb+2*e}, v{tb+2*e+1}")
            a(f"buffer_store_dwordx4 v[{tb+8}:{tb+11}], v10, s[24:27], s46 offen offset:{q*1024} sc1")
        if rb < 3: a(f"s_add_u32 s46, s46, {8*8192}")
    a(f"""s_lshl_b32 s49, s49, 5
    s_add_u32 s50, s50, s49
    s_lshl_b32 s49, s31, 2
    s_add_u32 s50, s50, s49
    s_add_u32 s50, s50, {FLAGBASE}
    v_lshlrev_b32 v11, 7, v1
    v_mov_b32 v17, 1
    s_lshl_b32 s46, s32, 3
    s_waitcnt vmcnt(0)""")
    a.label("L_rdy")
    a(f"""v_readfirstlane_b32 s49, v16
    s_nop 3
    s_cmp_eq_u32 s49, 8
    s_cbranch_scc1 L_rdy_ok
    s_sleep 2
    buffer_load_dword v16, v{V_Z}, s[60:63], s46 offen sc1
    s_waitcnt vmcnt(0)
    s_branch L_rdy""")
    a.label("L_rdy_ok")
    a("""s_mov_b64 exec, 0xf
    buffer_store_dword v17, v11, s[24:27], s50 offen sc1
    s_mov_b64 exec, -1""")
    if stamps: stamp(a, 4)
    a.label("L_tail")
    a("""s_load_dwordx4 s[4:7], s[0:1], 16
    s_load_dwordx2 s[8:9], s[0:1], 32
    s_load_dwordx8 s[36:43], s[0:1], 48
    v_lshrrev_b32 v3, 4, v1
    v_lshlrev_b32 v4, 3, v3
    v_and_b32 v5, 15, v1
    s_lshl_b32 s33, s2, 4
    v_add_u32 v6, s33, v5
    v_mul_u32_u24 v7, 26, v6
    v_lshl_add_u32 v7, v3, 1, v7
    v_lshlrev_b32 v8, 1, v3
    v_mov_b32 v9, 0
    v_lshlrev_b32 v2, 4, v1
    v_and_b32 v10, 7, v1
    v_lshlrev_b32 v10, 2, v10
    s_waitcnt lgkmcnt(0)""")
    srd(a, 16, 4, 4096*13*2)
    srd(a, 20, 6, 26)
    srd(a, 12, 36, 512)
    srd(a, 44, 38, 512)
    srd(a, 48, 42, 8192)
    srd(a, 64, 8, 2)
    srd(a, 68, 40, 2)
    a("s_lshl_b32 s32, s55, 6")
    for c in range(2):
        a(f"buffer_load_dwordx2 v[{12+2*c}:{13+2*c}], v4, s[12:15], s32 offen offset:{c*32}")
        a(f"buffer_load_dwordx2 v[{16+2*c}:{17+2*c}], v4, s[44:47], s32 offen offset:{c*32}")
    for q in range(4):
        a(f"buffer_load_ushort v{20+q}, v7, s[16:19], 0 offen offset:{q*8}")
        a(f"buffer_load_ushort v{24+q}, v8, s[20:23], 0 offen offset:{q*8}")
    a("buffer_load_ushort v28, v9, s[64:67], 0 offen")
    a("buffer_load_ushort v29, v9, s[68:71], 0 offen")
    a(f"""s_lshl_b32 s33, s2, 7
    s_lshr_b32 s34, s55, 2
    s_lshl_b32 s34, s34, 5
    s_add_u32 s33, s33, s34
    s_add_u32 s33, s33, {FLAGBASE}""")
    a.label("L_poll")
    a("""buffer_load_dword v30, v10, s[24:27], s33 offen sc1
    s_waitcnt vmcnt(0)
    v_cmp_ne_u32 vcc, 1, v30
    s_nop 1
    s_cbranch_vccnz L_poll""")
    if stamps: stamp(a, 5)
    a("""s_lshl_b32 s33, s2, 16
    s_lshl_b32 s34, s55, 10
    s_add_u32 s33, s33, s34""")
    for src in range(8):
        a(f"buffer_load_dwordx4 v[{32+4*src}:{35+4*src}], v2, s[24:27], s33 offen sc1")
        if src < 7: a("s_add_u32 s33, s33, 8192")
    for q in range(4):
        a(f"v_lshlrev_b32 v{20+q}, 16, v{20+q}")
        a(f"v_lshlrev_b32 v{24+q}, 16, v{24+q}")
    a("v_cmp_eq_u32 vcc, 0, v3")
    a("v_mov_b32 v31, 0")
    a("v_mov_b32 v30, 0")
    a("v_cndmask_b32 v23, 0, v23, vcc")
    for q in range(4):
        a(f"v_fmac_f32 v31, v{20+q}, v{24+q}")
    for src in range(8):
        a(f"s_waitcnt vmcnt({7-src})")
        for d in range(4):
            r = 32 + 4*src + d
            if src == 0:
                a(f"v_lshlrev_b32 v{64+2*d}, 16, v{r}")
                a(f"v_and_b32 v{65+2*d}, 0xffff0000, v{r}")
            else:
                a(f"v_lshlrev_b32 v72, 16, v{r}")
                a(f"v_and_b32 v73, 0xffff0000, v{r}")
                a(f"v_add_f32 v{64+2*d}, v{64+2*d}, v72")
                a(f"v_add_f32 v{65+2*d}, v{65+2*d}, v73")
    if stamps: stamp(a, 6)
    for e in range(8):
        c, r = e // 4, e % 4
        bsrc = 12 + 2*c + r//2
        wsrc = 16 + 2*c + r//2
        bf16r(a, 64+e, 64+e)
        if r % 2 == 0:
            a(f"v_lshlrev_b32 v72, 16, v{bsrc}")
            a(f"v_lshlrev_b32 v73, 16, v{wsrc}")
        else:
            a(f"v_and_b32 v72, 0xffff0000, v{bsrc}")
            a(f"v_and_b32 v73, 0xffff0000, v{wsrc}")
        a(f"v_add_f32 v{64+e}, v{64+e}, v72")
        bf16r(a, 64+e, 64+e)
        a(f"v_cmp_lt_f32 vcc, 0, v{64+e}")
        a("s_nop 1")
        a(f"v_cndmask_b32 v72, 0, 1.0, vcc")
        a(f"v_mul_f32 v{64+e}, v{64+e}, v72")
        a(f"v_fmac_f32 v30, v{64+e}, v73")
    a(f"""v_xor_b32 v10, 16, v1
    v_lshlrev_b32 v10, 2, v10
    v_xor_b32 v11, 32, v1
    v_lshlrev_b32 v11, 2, v11
    ds_bpermute_b32 v72, v10, v30
    ds_bpermute_b32 v73, v10, v31
    s_waitcnt lgkmcnt(0)
    v_add_f32 v30, v30, v72
    v_add_f32 v31, v31, v73
    ds_bpermute_b32 v72, v11, v30
    ds_bpermute_b32 v73, v11, v31
    s_waitcnt lgkmcnt(0)
    v_add_f32 v30, v30, v72
    v_add_f32 v31, v31, v73
    s_lshl_b32 s32, s55, 6
    s_add_u32 s32, s32, {RED}
    v_lshlrev_b32 v10, 2, v5
    v_add_u32 v11, s32, v10
    v_add_u32 v10, {RED}, v10
    ds_write_b32 v11, v30
    s_waitcnt lgkmcnt(0)
    s_barrier
    s_cmp_lg_u32 s55, 0
    s_cbranch_scc1 L_end""")
    for w in range(8):
        a(f"ds_read_b32 v{32+w}, v10 offset:{64*w}")
    a("""v_lshlrev_b32 v28, 16, v28
    v_lshlrev_b32 v29, 16, v29
    s_waitcnt lgkmcnt(0)
    v_add_f32 v32, v32, v33
    v_add_f32 v34, v34, v35
    v_add_f32 v36, v36, v37
    v_add_f32 v38, v38, v39
    v_add_f32 v32, v32, v34
    v_add_f32 v36, v36, v38
    v_add_f32 v32, v32, v36""")
    bf16r(a, 32, 32)
    a("v_add_f32 v32, v32, v29")
    bf16r(a, 32, 32)
    bf16r(a, 31, 31)
    a("v_add_f32 v31, v31, v28")
    bf16r(a, 31, 31)
    a("v_add_f32 v32, v31, v32")
    bf16r(a, 32, 32)
    a("""v_mul_f32 v32, 0xbfb8aa3b, v32
    v_exp_f32 v32, v32
    s_nop 0
    v_add_f32 v32, 1.0, v32
    v_rcp_f32 v32, v32
    s_nop 0
    v_cvt_pk_bf16_f32 v32, v32, v32
    v_lshlrev_b32 v6, 1, v6
    s_mov_b64 exec, 0xffff
    buffer_store_short v32, v6, s[48:51], 0 offen
    s_mov_b64 exec, -1""")
    if stamps:
        a("s_waitcnt vmcnt(0)")
        stamp(a, 7)
        a("v_mov_b32 v25, v0")
        stamp_store(a, 24, vtmp=20)
    a.label("L_end")
    return a.text()

def build(stamps=False):
    return file_text([f"; @launch grid=(256,1,1) block=(512,1,1) lds={LDS_BYTES}"],
                     [(KNAME, kernel(stamps), NV + 128, 102, NV)])

if __name__ == "__main__":
    open("v2.s", "w").write(build(False))
    open("v2s.s", "w").write(build(True))
```
